```python
import torch

def _softmax(x, axis=-1):
    return torch.softmax(x, dim=axis)
def _gelu(x):
    return torch.nn.functional.gelu(x, approximate="tanh")
def _silu(x):
    return torch.nn.functional.silu(x)
def _sigmoid(x):
    return torch.sigmoid(x)
def _layernorm(x, axis=-1, eps=1e-5):
    m = x.mean(dim=axis, keepdim=True)
    v = x.var(dim=axis, keepdim=True, unbiased=False)
    return (x - m) / torch.sqrt(v + eps)
def _scatter_add(tgt, idx, src, axis=0):
    return tgt.clone().index_add_(axis, idx, src)
def _segment_sum(src, seg, n):
    out = torch.zeros((n,) + src.shape[1:], dtype=src.dtype)
    return out.index_add_(0, seg, src)
def _pad(x, pw):
    flat = tuple(v for pair in reversed(pw) for v in pair)
    return torch.nn.functional.pad(x, flat)

kernel_name = 'standalone__edge_featured_mpnn_gatedgcn__graph'

def setup_inputs():

    _w = (lambda a: (lambda t: t.to(torch.bfloat16) if t.is_floating_point() else t)(torch.as_tensor(a)))
    N, deg, D, De = 10000, 16, 256, max(0, 1)
    E = N * deg
    return {
        "x": _w((lambda *s: torch.randn(*s, dtype=torch.bfloat16) * 0.4)(N, D)),
        "e_attr": _w((lambda *s: torch.randn(*s, dtype=torch.bfloat16) * 0.8)(E, De)),
        "src": _w((lambda lo, hi, *s: torch.randint(lo, hi, s))(0, N, E).to(torch.int64)),
        "dst": _w((lambda lo, hi, *s: torch.randint(lo, hi, s))(0, N, E).to(torch.int64)),
        "w_a": _w((lambda *s: torch.randn(*s, dtype=torch.bfloat16) * 0.4)(D, D)),
        "w_b": _w((lambda *s: torch.randn(*s, dtype=torch.bfloat16) * 0.4)(D, D)),
        "w_c": _w((lambda *s: torch.randn(*s, dtype=torch.bfloat16) * 0.8)(De, D)),
        "w_u": _w((lambda *s: torch.randn(*s, dtype=torch.bfloat16) * 0.05)(D, D)),
        "w_v": _w((lambda *s: torch.randn(*s, dtype=torch.bfloat16) * 0.05)(D, D)),
    }

def reference(x, e_attr, src, dst, w_a, w_b, w_c, w_u, w_v):
    N, D = x.shape
    hv = x @ w_v
    g = x[dst] @ w_a + x[src] @ w_b + e_attr @ w_c
    eta = _sigmoid(g)
    denom = _segment_sum(eta, dst, N) + 1e-6
    eta_n = eta / denom[dst]
    agg = _segment_sum(eta_n * hv[src], dst, N)
    z = x @ w_u + agg
    relu_z = torch.where(z > 0, z, 0 * z)
    return x + relu_z
```

```python
import re
TRANS=("v_exp_","v_log_","v_rcp_","v_rsq_","v_sqrt_","v_sin_","v_cos_")
def regs_of(op):
    op=op.strip()
    op=re.sub(r"^-","",op); op=re.sub(r"^\|(.*)\|$",r"\1",op); op=re.sub(r"^abs\((.*)\)$",r"\1",op)
    m=re.fullmatch(r"([vs])(\d+)",op)
    if m: return {(m[1],int(m[2]))}
    m=re.fullmatch(r"([vs])\[(\d+):(\d+)\]",op)
    if m: return {(m[1],i) for i in range(int(m[2]),int(m[3])+1)}
    if op=="vcc": return {("s",106),("s",107)}
    if op=="vcc_lo": return {("s",106)}
    if op=="vcc_hi": return {("s",107)}
    if op=="exec": return {("s",126),("s",127)}
    if op=="exec_lo": return {("s",126)}
    if op=="exec_hi": return {("s",127)}
    if op=="m0": return {("s",124)}
    return set()
class Ins:
    def __init__(s,text):
        s.text=text
        t=text.split(";")[0].strip()
        s.label=t.endswith(":")
        s.mn=""; s.dst=set(); s.src=set(); s.mods=""
        if s.label or not t or t.startswith("."): s.kind="none"; return
        p=t.split(None,1); s.mn=mn=p[0]; rest=p[1] if len(p)>1 else ""
        ops=[];cur="";d=0
        for c in rest:
            if c in "[(": d+=1
            if c in "])": d-=1
            if c=="," and d==0: ops.append(cur);cur=""
            else: cur+=c
        if cur.strip():
            last=cur.strip().split(None,1)
            ops.append(last[0]); s.mods=last[1] if len(last)>1 else ""
        ops=[o.strip() for o in ops]; s.ops=ops
        R=[regs_of(o) for o in ops]
        U=lambda l:set().union(*l) if l else set()
        if mn.startswith("v_mfma"): s.kind="mfma"; s.dst=R[0]; s.src=U(R[1:]); s.srcc=R[3]
        elif mn.startswith("v_"):
            s.kind="valu"; s.dst=R[0]; s.src=U(R[1:])
            if mn.startswith("v_cmpx"): s.dst=s.dst|regs_of("exec")
            if re.match(r"v_(add|sub|subrev|addc|subb)_co",mn) or mn.startswith("v_mad_u64"): s.dst=R[0]|R[1]; s.src=U(R[2:])
            if mn.startswith(("v_fmac","v_writelane","v_dot2c")) or "dpp" in mn or "row_" in s.mods or "UNUSED_PRESERVE" in s.mods: s.src|=R[0]
            if mn.startswith("v_permlane") or mn.startswith("v_swap"): s.dst=R[0]|R[1]; s.src=R[0]|R[1]
            if mn.startswith("v_cndmask") and len(ops)==3: s.src|=regs_of("vcc")
        elif mn.startswith("ds_"):
            s.kind="lds"
            if "read" in mn or "rtn" in mn or "permute" in mn or "swizzle" in mn: s.dst=R[0]; s.src=U(R[1:])
            else: s.src=U(R)
        elif mn.startswith(("buffer_","global_")):
            s.kind="vmem"
            isld="load" in mn
            s.ldsdma=(" lds" in " "+s.mods) or "_lds_" in mn
            if isld and not s.ldsdma: s.dst=R[0]; s.src=U(R[1:])
            else: s.src=U(R)
            s.wide_store=(not isld) and ("x3" in mn or "x4" in mn)
            if s.wide_store: s.sdata=R[0] if mn.startswith("buffer") else R[1]
        elif mn.startswith("s_"):
            s.kind="salu"
            if mn.startswith(("s_cmp","s_bitcmp","s_cbranch","s_branch","s_waitcnt","s_nop","s_barrier","s_setprio","s_endpgm","s_sleep")): s.src=U(R)
            else: s.dst=R[0] if R else set(); s.src=U(R[1:])
            if "saveexec" in mn: s.dst=s.dst|regs_of("exec")
        else: raise ValueError("unknown "+text)
    def ws(s):
        if s.kind=="none": return 0
        if s.mn=="s_nop": return int(s.ops[0],0)+1
        return 1
def passes(mn):
    if "32x32" in mn: return 8
    return 4
def need(p,c):
    n=0
    V=lambda S:{r for r in S if r[0]=="v"}
    Sg=lambda S:{r for r in S if r[0]=="s"}
    if p.kind=="valu":
        dv=V(p.dst); ds=Sg(p.dst)
        if c.kind=="valu":
            if p.mn.startswith(TRANS) and not c.mn.startswith(TRANS) and dv&c.src: n=max(n,1)
            if p.mn.startswith(TRANS) and c.mn.startswith(TRANS) and dv&c.src: n=max(n,1)
            if c.mn.startswith(("v_readlane","v_readfirstlane")) and dv&c.src: n=max(n,1)
            if ("dpp" in c.mn or "row_" in c.mods or "quad_perm" in c.mods or "wave_" in c.mods) and dv&c.src: n=max(n,2)
            if ("dpp" in c.mn or "row_" in c.mods or "quad_perm" in c.mods) and ("s",126) in ds: n=max(n,5)
            if c.mn.startswith("v_permlane") and dv&c.src: n=max(n,2)
            if ds&c.src:
                n=max(n,2)
                if c.mn.startswith(("v_readlane","v_writelane")): n=max(n,4)
            if ("s",126) in ds and c.mn.startswith(("v_readlane","v_readfirstlane","v_writelane","v_permlane")): n=max(n,4)
            if ("sdwa" in p.mn or ("op_sel" in p.mods and not p.mn.startswith("v_pk_"))) and dv&(c.src|c.dst): n=max(n,1)
        if c.kind=="mfma":
            if dv&c.src: n=max(n,2)
            if ("s",126) in ds: n=max(n,4)
        if c.kind=="vmem" and ds&c.src: n=max(n,5)
    if p.kind=="mfma":
        ps=passes(p.mn)
        if c.kind=="mfma":
            if p.dst&(c.src-c.srcc) or (p.dst&regs_of(c.ops[1])) or (p.dst&regs_of(c.ops[2])): n=max(n,{4:8,8:12}[ps])
            elif p.dst&c.srcc and (p.dst!=c.srcc or passes(c.mn)!=ps): n=max(n,{4:6,8:10}[ps])
        elif c.kind in("valu","lds","vmem"):
            if p.dst&(c.src|c.dst): n=max(n,{4:8,8:12}[ps])
            if c.kind=="valu" and p.srcc&c.dst: n=max(n,{4:3,8:7}[ps])
    if p.kind=="salu":
        if ("s",124) in p.dst and ((c.kind=="vmem" and c.ldsdma) or "addtid" in c.mn): n=max(n,1)
    if p.kind=="vmem" and p.wide_store and p.sdata&c.dst: n=max(n,2 if c.kind=="valu" else 1)
    return n
class Asm:
    def __init__(s): s.L=[]; s.vm=[]; s.nops=0
    def __call__(s,text):
        for line in text.split("\n"):
            line=line.strip()
            if not line: continue
            i=Ins(line)
            if i.kind!="none":
                d=0; req=0
                for p in reversed(s.L):
                    if d>=20: break
                    if p.kind!="none":
                        req=max(req,need(p,i)-d); d+=p.ws()
                        if p.mn in("s_branch","s_endpgm"): break
                if req>0:
                    s.L.append(Ins(f"s_nop {req-1}")); s.nops+=1
            s.L.append(i)
    def vmop(s,text,tag): s(text); s.vm.append(tag)
    def vmwait(s,tag,extra=""):
        idx=max(i for i,t in enumerate(s.vm) if t==tag)
        n=len(s.vm)-1-idx
        s(f"s_waitcnt vmcnt({n}) {extra}".strip())
    def text(s):
        return "\n".join(("" if i.label or i.text.startswith(".") else "  ")+i.text for i in s.L)+"\n"
```

```python
def k2(g):
    globals().update({k:v for k,v in vars(g).items() if not k.startswith("__")})
    a=K("gcn_k2_kernel",0x40000)
    SX,SW0,SW1,SWS,ST,SOUT,SC=40,44,48,52,56,60,64
    D=2
    a(f"""
    s_cmp_ge_u32 s2, 256
    s_cbranch_scc1 K2_END
    s_load_dwordx2 s[{SX}:{SX+1}], s[0:1], 0
    s_load_dwordx2 s[{SW0}:{SW0+1}], s[0:1], 32
    s_load_dwordx2 s[{SW1}:{SW1+1}], s[0:1], 56
    s_load_dwordx2 s[{SWS}:{SWS+1}], s[0:1], 88
    s_load_dwordx2 s[{SOUT}:{SOUT+1}], s[0:1], 72
    s_load_dwordx2 s[{SC}:{SC+1}], s[0:1], 48
    v_lshrrev_b32 v2, 6, v0
    v_and_b32 v1, 63, v0
    v_readfirstlane_b32 s3, v2
    s_and_b32 s4, s2, 3                ; slice
    s_lshr_b32 s5, s2, 2               ; blk
    s_mul_i32 s6, s5, {BN*512}         ; r0*512
    """)
    srd(a,SX,N*512); srd(a,SW0,131072); srd(a,SW1,131072); srd(a,SWS,0x10000000); srd(a,SOUT,N*512); srd(a,SC,512)
    dma_addr(a,22,23,"s4")
    a(f"""
    v_lshrrev_b32 v2, 4, v0            ; cell
    v_and_b32 v7, 15, v0               ; sub / i
    v_mul_u32_u24 v3, {CELL}, v2
    v_lshl_add_u32 v3, v7, 4, v3
    v_lshlrev_b32 v2, 2, v2
    v_lshlrev_b32 v4, 2, v0
    v_lshlrev_b32 v5, 3, v7
    s_mul_i32 s11, s5, {BKT}
    s_add_u32 s11, s11, {REC_OFF}
    s_lshl_b32 s12, s5, 8
    s_add_u32 s12, s12, {CNT_OFF}
    s_lshl_b32 s13, s4, 12
    s_add_u32 s13, s13, {FLG_OFF}
    s_lshl_b32 s14, s4, 7
    """)
    if DIAG: a.stamp()
    a("s_waitcnt lgkmcnt(0)")
    a.vmop(f"buffer_load_dword v20, v2, s[{SWS}:{SWS+3}], s12 offen","R")
    a.vmop(f"buffer_load_dwordx4 v[8:11], v3, s[{SWS}:{SWS+3}], s11 offen","R")
    a.vmop(f"buffer_load_dwordx4 v[12:15], v3, s[{SWS}:{SWS+3}], s11 offen offset:256","R")
    a("s_mov_b32 exec_lo, 0x00ff00ff\ns_mov_b32 exec_hi, 0x00ff00ff")
    a.vmop(f"buffer_load_dwordx4 v[16:19], v3, s[{SWS}:{SWS+3}], s11 offen offset:512","R")
    a("s_mov_b64 exec, -1")
    a.vmop(f"buffer_load_dword v21, v4, s[{SWS}:{SWS+3}], s13 offen","R")
    a.vmop(f"buffer_load_dwordx2 v[56:57], v5, s[{SC}:{SC+3}], s14 offen","R")
    dma_issue_w(a,22,SW0,SW1)
    dma_issue_x(a,23,SX,"s6",range(5))
    a(f"""
    s_mul_i32 s8, s4, {TS}
    s_add_u32 s{ST}, s{SWS}, s8
    s_addc_u32 s{ST+1}, s{SWS+1}, 0
    s_or_b32 s{ST+1}, s{ST+1}, 0x1000000
    s_mov_b32 s{ST+2}, {DUMMY+1}
    s_mov_b32 s{ST+3}, 0x20000
    v_cmp_le_u32 vcc, {RECB//16}, v0
    v_mov_b32 v2, {DUMMY}
    v_lshlrev_b32 v6, 4, v0
    v_cndmask_b32 v2, 0, v2, vcc
    v_mov_b32 v3, v2
    v_mov_b32 v4, v2
    v_mov_b32 v5, v2
    ds_write_b128 v6, v[2:5]
    """)
    XA=60; XF=24
    ACC=[(40,44),(48,52),(8,12)]
    frag_addr(a,22,XA)
    a(f"""
    s_mov_b32 s70, {NLOG2E}
    s_mov_b32 s71, {NLOG2E}
    s_mov_b32 s72, {f2u(2.0**-60)}
    s_mov_b32 s73, {f2u(2.0**-60)}
    s_mov_b32 s74, {f2u(1e-6*2.0**60)}
    s_mov_b32 s75, {f2u(1e-6*2.0**60)}
    s_mov_b32 s76, 0xffff0000
    """)
    a.vmwait("X1","lgkmcnt(0)"); a("s_barrier"); a.stamp()
    load_wfrags(a,22)
    tile_pre(a,XF,XA,0)
    tile_mma(a,XF,XA,0,*ACC[0])
    a.vmwait("R")
    RK=[20,21,22,23,58,59]
    a(f"""
    v_cmp_lt_u32 vcc, {CAP}, v20
    v_cmp_ne_u32 s[30:31], 0, v21
    v_min_u32 v2, {CAP}, v20
    v_lshlrev_b32 v3, 1, v7
    s_or_b64 s[30:31], s[30:31], vcc
    v_sub_u32 v2, v2, v3
    v_mov_b32 v7, 0
    v_mov_b32 v3, 1
    v_cmp_lt_i32 s[16:17], 0, v2
    v_cmp_lt_i32 s[18:19], 1, v2
    v_cmp_lt_i32 s[20:21], 32, v2
    v_cmp_lt_i32 s[22:23], 33, v2
    v_cmp_lt_i32 s[24:25], 64, v2
    v_cmp_lt_i32 vcc, 65, v2
    s_mov_b64 s[26:27], vcc
    """)
    for k in range(6):
        a(f"s_mov_b64 exec, s[{16+2*k}:{17+2*k}]")
        if k==4: a("s_cbranch_execz K2_RK_DONE")
        a(f"ds_add_rtn_u32 v{RK[k]}, v{9+2*k}, v3 offset:{DEG}\nv_max_f32 v7, |v{8+2*k}|, v7")
    a("K2_RK_DONE:\ns_mov_b64 exec, -1")
    a.vmwait("X3","lgkmcnt(0)"); a("s_barrier"); a.stamp()
    a(f"""
    s_cmp_lg_u32 s3, 15
    s_cbranch_scc1 K2_NOPFX
    v_lshlrev_b32 v2, 4, v1
    ds_read_b128 v[24:27], v2 offset:{DEG}
    s_mul_i32 s8, s5, {BN}
    s_sub_u32 s8, {N}, s8
    s_min_u32 s8, s8, {BN}
    v_lshlrev_b32 v28, 2, v1
    v_subrev_u32 v28, s8, v28
    v_cmp_gt_i32 s[32:33], 0, v28
    v_cmp_gt_i32 s[34:35], -1, v28
    v_cmp_gt_i32 s[36:37], -2, v28
    v_cmp_gt_i32 s[38:39], -3, v28
    s_waitcnt lgkmcnt(0)
    """)
    for j in range(4):
        a(f"v_add_u32 v{24+j}, 1, v{24+j}\nv_lshrrev_b32 v{24+j}, 1, v{24+j}\nv_max_u32 v{24+j}, 1, v{24+j}\nv_cndmask_b32 v{24+j}, 0, v{24+j}, s[{32+2*j}:{33+2*j}]")
    a(f"""
    v_add_u32 v25, v24, v25
    v_add_u32 v26, v25, v26
    v_add_u32 v27, v26, v27
    v_mov_b32 v29, v27
    v_add_u32_dpp v29, v29, v29 row_shr:1 row_mask:0xf bank_mask:0xf bound_ctrl:0
    v_add_u32_dpp v29, v29, v29 row_shr:2 row_mask:0xf bank_mask:0xf bound_ctrl:0
    v_add_u32_dpp v29, v29, v29 row_shr:4 row_mask:0xf bank_mask:0xf bound_ctrl:0
    v_add_u32_dpp v29, v29, v29 row_shr:8 row_mask:0xf bank_mask:0xf bound_ctrl:0
    v_add_u32_dpp v29, v29, v29 row_bcast:15 row_mask:0xa bank_mask:0xf
    v_add_u32_dpp v29, v29, v29 row_bcast:31 row_mask:0xc bank_mask:0xf
    v_readlane_b32 s9, v29, 63         ; NP
    v_sub_u32 v30, v29, v27            ; excl
    v_add_u32 v24, v30, v24            ; ends
    v_add_u32 v25, v30, v25
    v_add_u32 v26, v30, v26
    v_mov_b32 v31, {RECB}
    v_lshl_add_u32 v32, v30, 3, v31
    v_lshl_add_u32 v33, v24, 3, v31
    v_lshl_add_u32 v34, v25, 3, v31
    v_lshl_add_u32 v35, v26, 3, v31
    s_mov_b32 exec_lo, 0
    s_mov_b32 exec_hi, 0xffffff00
    v_mov_b32 v32, -1
    v_mov_b32 v33, -1
    v_mov_b32 v34, -1
    v_mov_b32 v35, -1
    s_mov_b64 exec, -1
    ds_write_b128 v2, v[32:35] offset:{START}
    v_mov_b32 v36, s9
    v_mov_b32 v37, 0
    ds_write_b32 v37, v36 offset:{MISC}
    s_cmp_gt_u32 s9, {NPCAP}
    s_cbranch_scc1 K2_PFX_DONE
    v_mov_b32 v36, 1
    s_mov_b64 exec, s[32:33]
    ds_write_b8 v24, v36 offset:{FLB-1}
    s_mov_b64 exec, s[34:35]
    ds_write_b8 v25, v36 offset:{FLB-1}
    s_mov_b64 exec, s[36:37]
    ds_write_b8 v26, v36 offset:{FLB-1}
    s_mov_b64 exec, s[38:39]
    ds_write_b8 v29, v36 offset:{FLB-1}
    s_mov_b64 exec, -1
    K2_PFX_DONE:
    K2_NOPFX:
    """)
    tile_pre(a,XF,XA,1)
    tile_mma(a,XF,XA,1,*ACC[1])
    a.vmwait("X4","lgkmcnt(0)"); a("s_barrier"); a.stamp()
    a(f"v_mov_b32 v2, 0\nds_read_b32 v3, v2 offset:{MISC}")
    for k in range(6):
        a(f"s_mov_b64 exec, s[{16+2*k}:{17+2*k}]")
        if k==4: a("s_cbranch_execz K2_SC0")
        a(f"ds_read_b32 v{9+2*k}, v{9+2*k} offset:{START}")
    a(f"""
    K2_SC0:
    s_mov_b64 exec, -1
    v_lshrrev_b32 v4, 4, v1            ; g / q
    v_and_b32 v5, 15, v1               ; r
    s_waitcnt lgkmcnt(0)
    v_readfirstlane_b32 s9, v3         ; NP
    s_cmp_gt_u32 s9, {NPCAP}
    s_cbranch_scc0 K2_SC1
    s_mov_b64 s[30:31], -1
    s_mov_b32 s9, 64
    s_branch K2_SC2
    K2_SC1:
    """)
    for k in range(6):
        a(f"s_mov_b64 exec, s[{16+2*k}:{17+2*k}]")
        if k==4: a("s_cbranch_execz K2_SC2")
        a(f"v_lshl_add_u32 v{9+2*k}, v{RK[k]}, 2, v{9+2*k}\nds_write_b32 v{9+2*k}, v{8+2*k}")
    a(f"""
    K2_SC2:
    s_mov_b64 exec, -1
    s_add_u32 s9, s9, 3
    s_lshr_b32 s9, s9, 2               ; NQ
    s_lshr_b32 s10, s9, 4              ; base
    s_and_b32 s11, s9, 15              ; rem
    s_min_u32 s12, s3, s11
    s_addc_u32 s13, s10, 0
    s_mul_i32 s14, s3, s10
    s_add_u32 s14, s14, s12
    s_lshl_b32 s14, s14, 2             ; P0
    s_and_b32 s8, s3, 3                ; ft
    s_lshl_b32 s15, s4, 2
    s_add_u32 s15, s15, s8
    s_lshl_b32 s15, s15, 1             ; slice*8+ft*2
    v_lshrrev_b32 v2, 1, v4
    v_add_u32 v2, s15, v2
    v_xor_b32 v2, v2, v5
    v_lshlrev_b32 v2, 4, v2
    v_and_b32 v3, 1, v4
    v_lshl_add_u32 v2, v3, 3, v2
    s_lshr_b32 s12, s3, 2              ; ng
    s_lshl_b32 s12, s12, 4
    v_add_u32 v6, s12, v5
    v_lshl_add_u32 v2, v6, 9, v2
    ds_read_b64 v[16:17], v2 offset:{XB}
    ds_read_b64 v[18:19], v2 offset:{XB+32768}
    v_add_u32 v2, 0x10000, v2
    ds_read_b64 v[20:21], v2 offset:{XB}
    ; vFin
    v_mul_u32_u24 v59, {ROWS}, v6
    v_lshl_add_u32 v59, v4, 4, v59
    s_lshl_b32 s8, s8, 6
    s_add_u32 s8, s8, {XB}
    v_add_u32 v59, s8, v59
    ; vRec
    v_mul_u32_u24 v22, s13, v4
    v_add_u32 v22, s14, v22
    v_lshlrev_b32 v22, 3, v22
    v_add_u32 v22, {RECB}, v22
    v_and_b32 v2, 3, v1
    v_lshrrev_b32 v3, 2, v1
    v_mul_u32_u24 v2, s13, v2
    v_add3_u32 v2, v2, v3, s14
    ds_read_u8 v23, v2 offset:{FLB}
    ds_read_u8 v58, v2 offset:{FLB+16}
    v_cmp_gt_u32 s[16:17], s13, v3
    v_add_u32 v3, 16, v3
    v_cmp_gt_u32 s[18:19], s13, v3
    s_waitcnt lgkmcnt(0)
    v_cmp_ne_u32 s[20:21], 0, v23
    v_cmp_ne_u32 s[22:23], 0, v58
    s_and_b64 s[20:21], s[20:21], s[16:17]
    s_and_b64 s[22:23], s[22:23], s[18:19]
    s_or_b32 s16, s20, s21
    s_or_b32 s16, s16, s22
    s_lshr_b32 s17, s16, 16
    s_or_b32 s16, s16, s17
    s_lshr_b32 s17, s16, 8
    s_or_b32 s16, s16, s17
    s_lshr_b32 s17, s16, 4
    s_or_b32 s16, s16, s17
    s_and_b32 s16, s16, 15
    s_cmp_eq_u32 s16, 15
    s_cbranch_scc1 K2_ALLF
    v_mov_b32 v2, {ZERO16}
    v_mov_b32 v3, 1
    ds_write_b32 v2, v3 offset:20
    K2_ALLF:
    s_bitreplicate_b64_b32 s[16:17], s16
    s_bitreplicate_b64_b32 s[16:17], s16
    s_bitreplicate_b64_b32 s[16:17], s16
    s_bitreplicate_b64_b32 s[16:17], s16
    s_cmp_ge_u32 s3, 8
    s_cbranch_scc1 K2_NOT2
    """)
    tile_pre(a,XF,XA,2)
    tile_mma(a,XF,XA,2,*ACC[2])
    a(f"""
    s_branch K2_T2DONE
    K2_NOT2:
    s_cmp_lg_u32 s3, 14
    s_cbranch_scc1 K2_T2DONE
    v_lshrrev_b32 v24, 2, v1           ; w'
    v_and_b32 v25, 3, v1               ; q
    v_cmp_gt_u32 vcc, s11, v24
    v_min_u32 v26, s11, v24
    v_mad_u32_u24 v26, v24, s10, v26
    v_mov_b32 v27, s10
    v_addc_co_u32 v27, vcc, 0, v27, vcc
    v_mul_u32_u24 v27, v27, v25
    v_lshl_add_u32 v26, v26, 2, v27    ; ps
    v_lshlrev_b32 v26, 3, v26
    v_add_u32 v26, {RECB}, v26
    v_mov_b32 v27, 0
    """)
    for st in (128,64,32,16,8,4,2,1):
        a(f"""
        ds_read_b32 v28, v27 offset:{START+4*st}
        v_add_u32 v29, {4*st}, v27
        s_waitcnt lgkmcnt(0)
        v_cmp_le_u32 vcc, v28, v26
        v_cndmask_b32 v27, v27, v29, vcc
        """)
    a(f"""
    v_mul_u32_u24 v27, {ROWS//4}, v27
    v_add_u32 v27, {XB}, v27
    v_lshlrev_b32 v28, 2, v1
    ds_write_b32 v28, v27 offset:{N0T}
    K2_T2DONE:
    s_waitcnt lgkmcnt(0)
    s_barrier
    """)
    a.stamp()
    RING=96
    a(f"""
    ds_read_u16 v64, v22 offset:0
    ds_read_u16 v66, v22 offset:4
    ds_read_u16 v68, v22 offset:8
    ds_read_u16 v70, v22 offset:12
    s_lshl_b32 s8, s3, 4
    v_lshl_add_u32 v2, v4, 2, s8
    ds_read_b32 v23, v2 offset:{N0T}
    v_lshlrev_b32 v65, 4, v5
    v_mov_b32 v67, v65
    v_mov_b32 v69, v65
    v_mov_b32 v71, v65
    ; vOut
    v_lshlrev_b32 v60, 9, v6
    v_lshl_add_u32 v60, v4, 3, v60
    s_lshl_b32 s8, s15, 4
    v_add_u32 v60, s8, v60
    v_lshlrev_b32 v36, 16, v56
    v_and_b32 v37, s76, v56
    v_lshlrev_b32 v38, 16, v57
    v_and_b32 v39, s76, v57
    s_waitcnt lgkmcnt(0)
    """)
    assert D==2
    for j in range(4):
        a(f"buffer_load_dwordx4 v[{RING+4*j}:{RING+4*j+3}], v[{64+2*j}:{65+2*j}], s[{ST}:{ST+3}], 0 idxen offen")
    a(f"""
    v_add_u32 v23, v23, v65            ; vRow
    v_pk_mul_f32 v[36:37], v[36:37], s[70:71]
    v_pk_mul_f32 v[38:39], v[38:39], s[70:71]
    v_max3_f32 v2, |v36|, |v37|, |v38|
    v_max_f32 v2, |v39|, v2
    v_max_f32_dpp v2, v2, v2 row_ror:1 row_mask:0xf bank_mask:0xf
    v_max_f32_dpp v2, v2, v2 row_ror:2 row_mask:0xf bank_mask:0xf
    v_max_f32_dpp v2, v2, v2 row_ror:4 row_mask:0xf bank_mask:0xf
    v_max_f32_dpp v2, v2, v2 row_ror:8 row_mask:0xf bank_mask:0xf
    v_mul_f32 v2, v2, v7
    v_cmp_nge_f32 vcc, {f2u(THR_EC)}, v2
    v_mov_b32 v72, {f2u(-60.0)}
    v_mov_b32 v73, {f2u(-60.0)}
    s_or_b64 s[30:31], s[30:31], vcc
    v_mov_b32 v5, v65
    v_mov_b32 v7, v65
    v_mov_b32 v2, 0
    v_mov_b32 v3, 0
    ds_read_u16 v4, v22 offset:{D*8}
    ds_read_u16 v6, v22 offset:{D*8+4}
    ds_read_u16_d16_hi v2, v22 offset:2
    ds_read_u16_d16_hi v3, v22 offset:6
    v_mov_b32 v74, 0
    """)
    def ea(i):
        A=ACC[i][0]; t=76+4*(i&1)
        a(f"""
        v_pk_fma_f32 v[{t}:{t+1}], v[{A}:{A+1}], s[70:71], v[72:73]
        v_pk_fma_f32 v[{t+2}:{t+3}], v[{A+2}:{A+3}], s[70:71], v[72:73]
        v_max3_f32 v74, |v{A}|, |v{A+1}|, v74
        v_max3_f32 v74, |v{A+2}|, |v{A+3}|, v74
        v_exp_f32 v{t}, v{t}
        v_exp_f32 v{t+1}, v{t+1}
        v_exp_f32 v{t+2}, v{t+2}
        v_exp_f32 v{t+3}, v{t+3}
        """)
        if i==2: a(f"v_add_u32 v61, {2*64*ROWS}, v59\nds_write_b128 v61, v[{t}:{t+3}]")
        else: a(f"s_nop 0\nds_write_b128 v59, v[{t}:{t+3}] offset:{i*64*ROWS}")
    ea(0); ea(1)
    a("s_cmp_ge_u32 s3, 8\ns_cbranch_scc1 K2_EA_DONE")
    ea(2)
    a(f"""
    K2_EA_DONE:
    v_cmp_nge_f32 vcc, {f2u(THR_A)}, v74
    v_mov_b32 v58, {ZERO16}
    s_or_b64 s[30:31], s[30:31], vcc
    s_cbranch_scc0 K2_NOFLAG
    v_mov_b32 v62, 1
    ds_write_b32 v58, v62 offset:16
    K2_NOFLAG:
    """)
    for r in range(24,32): a(f"v_mov_b32 v{r}, 0")
    a("s_waitcnt lgkmcnt(0)\ns_barrier")
    a.stamp()
    a(f"""
    ds_read_b64 v[62:63], v58 offset:16
    ds_read_b128 v[32:35], v23
    s_sub_u32 s24, s13, 1              ; remaining-1
    s_lshr_b32 s25, s13, 1
    s_mov_b32 s26, 3
    s_setprio 3
    s_waitcnt lgkmcnt(0)
    v_readfirstlane_b32 s8, v62
    v_readfirstlane_b32 s27, v63
    s_cmp_lg_u32 s8, 0
    s_cbranch_scc1 K2_SLOW
    K2_LOOP:
    """)
    for j in range(D):
        r0=RING+8*j; r1=r0+4
        a(f"s_waitcnt vmcnt({2*D-2})")
        for h in (0,2):
            a(f"v_pk_fma_f32 v[{64+h}:{65+h}], v[2:3], v[{36+h}:{37+h}], v[{r0+h}:{r0+h+1}] op_sel_hi:[0,1,1]")
            a(f"v_pk_fma_f32 v[{68+h}:{69+h}], v[2:3], v[{36+h}:{37+h}], v[{r1+h}:{r1+h+1}] op_sel:[1,0,0]")
        for h in (0,2):
            a(f"v_lshlrev_b64 v[{72+h}:{73+h}], 16, v[{r0+h}:{r0+h+1}]")
            a(f"v_lshlrev_b64 v[{76+h}:{77+h}], 16, v[{r1+h}:{r1+h+1}]")
        a(f"""
        buffer_load_dwordx4 v[{r0}:{r0+3}], v[4:5], s[{ST}:{ST+3}], 0 idxen offen
        buffer_load_dwordx4 v[{r1}:{r1+3}], v[6:7], s[{ST}:{ST+3}], 0 idxen offen
        ds_read_u16 v4, v22 offset:{(j+D+1)*8}
        ds_read_u16 v6, v22 offset:{(j+D+1)*8+4}
        ds_read_u16_d16_hi v2, v22 offset:{(j+1)*8+2}
        ds_read_u16_d16_hi v3, v22 offset:{(j+1)*8+6}
        """)
        for r in (64,65,68,69,66,67,70,71): a(f"v_exp_f32 v{r}, v{r}")
        a("s_waitcnt lgkmcnt(4)")
        for h in (0,2):
            a(f"v_pk_fma_f32 v[{64+h}:{65+h}], v[{32+h}:{33+h}], v[{64+h}:{65+h}], s[72:73]")
            a(f"v_pk_fma_f32 v[{68+h}:{69+h}], v[{32+h}:{33+h}], v[{68+h}:{69+h}], s[72:73]")
        for h in (0,2): a(f"v_pk_mul_f32 v[{80+h}:{81+h}], v[{64+h}:{65+h}], v[{68+h}:{69+h}]")
        for h in (0,2): a(f"v_pk_mul_f32 v[{88+h}:{89+h}], v[{72+h}:{73+h}], v[{68+h}:{69+h}]")
        for r in range(80,84): a(f"v_rcp_f32 v{r}, v{r}")
        for h in (0,2):
            a(f"v_pk_add_f32 v[{84+h}:{85+h}], v[{64+h}:{65+h}], v[{68+h}:{69+h}]")
            a(f"v_pk_fma_f32 v[{88+h}:{89+h}], v[{76+h}:{77+h}], v[{64+h}:{65+h}], v[{88+h}:{89+h}]")
        for h in (0,2):
            a(f"v_pk_fma_f32 v[{24+h}:{25+h}], v[{84+h}:{85+h}], v[{80+h}:{81+h}], v[{24+h}:{25+h}]")
            a(f"v_pk_fma_f32 v[{28+h}:{29+h}], v[{88+h}:{89+h}], v[{80+h}:{81+h}], v[{28+h}:{29+h}]")
        a(f"""
        s_bfe_u32 s28, s20, {(4<<16)|(4*j)}
        s_waitcnt lgkmcnt(0)
        s_cbranch_scc0 K2_NF{j}
        s_bitreplicate_b64_b32 s[28:29], s28
        s_bitreplicate_b64_b32 s[28:29], s28
        s_bitreplicate_b64_b32 s[28:29], s28
        s_bitreplicate_b64_b32 exec, s28
        ds_write_b128 v23, v[24:27] offset:256
        ds_write_b128 v23, v[28:31] offset:512
        ds_read_b128 v[32:35], v23 offset:{ROWS}
        ds_read_b128 v[24:27], v58
        ds_read_b128 v[28:31], v58
        v_add_u32 v23, {ROWS}, v23
        s_mov_b64 exec, -1
        K2_NF{j}:
        s_sub_u32 s24, s24, 1
        s_cbranch_scc1 K2_LOOP_END
        """)
    a(f"""
    v_add_u32 v22, {D*8}, v22
    s_lshr_b64 s[20:21], s[20:21], {4*D}
    s_lshl_b32 s28, s22, {32-4*D}
    s_or_b32 s21, s21, s28
    s_lshr_b32 s22, s22, {4*D}
    s_cmp_gt_u32 s24, s25
    s_cbranch_scc1 K2_LOOP
    s_lshr_b32 s25, s25, 1
    s_sub_u32 s26, s26, 1
    s_cmp_eq_u32 s26, 2
    s_cbranch_scc1 K2_P2
    s_cmp_eq_u32 s26, 1
    s_cbranch_scc1 K2_P1
    s_setprio 0
    s_branch K2_LOOP
    K2_P2:
    s_setprio 2
    s_branch K2_LOOP
    K2_P1:
    s_setprio 1
    s_branch K2_LOOP
    K2_LOOP_END:
    s_waitcnt lgkmcnt(0)
    """)
    a.stamp()
    a(f"""
    s_barrier
    s_mov_b64 exec, s[16:17]
    ds_read_b128 v[64:67], v23 offset:256
    ds_read_b128 v[68:71], v23 offset:512
    s_waitcnt lgkmcnt(1)
    v_pk_add_f32 v[64:65], v[64:65], v[24:25]
    v_pk_add_f32 v[66:67], v[66:67], v[26:27]
    s_waitcnt lgkmcnt(0)
    v_pk_add_f32 v[68:69], v[68:69], v[28:29]
    v_pk_add_f32 v[70:71], v[70:71], v[30:31]
    ds_write_b128 v23, v[64:67] offset:256
    ds_write_b128 v23, v[68:71] offset:512
    s_cmp_eq_u32 s27, 0
    s_cbranch_scc1 K2_FIN0
    s_waitcnt lgkmcnt(0)
    s_barrier
    s_not_b64 exec, s[16:17]
    s_cbranch_execz K2_FIN0
    """)
    for r in range(8): a(f"ds_add_f32 v23, v{24+r} offset:{256+(r>>2)*256+(r&3)*4}")
    a("K2_FIN0:\ns_mov_b64 exec, -1")
    a("K2_FIN:\ns_waitcnt lgkmcnt(0)\ns_barrier")
    a.stamp()
    def fin_rd(i):
        t=64+8*i
        ad,off=("v61",0) if i==2 else ("v59",i*64*ROWS)
        a(f"ds_read_b128 v[{t}:{t+3}], {ad} offset:{off+256}\nds_read_b128 v[{t+4}:{t+7}], {ad} offset:{off+512}")
    def fin(i):
        t=64+8*i; U=ACC[i][1]; X=16+2*i
        a(f"""
        v_pk_add_f32 v[{t}:{t+1}], v[{t}:{t+1}], s[74:75]
        v_pk_add_f32 v[{t+2}:{t+3}], v[{t+2}:{t+3}], s[74:75]
        v_rcp_f32 v{t}, v{t}
        v_rcp_f32 v{t+1}, v{t+1}
        v_rcp_f32 v{t+2}, v{t+2}
        v_rcp_f32 v{t+3}, v{t+3}
        v_lshlrev_b32 v88, 16, v{X}
        v_and_b32 v89, s76, v{X}
        v_lshlrev_b32 v90, 16, v{X+1}
        v_and_b32 v91, s76, v{X+1}
        v_pk_fma_f32 v[{t}:{t+1}], v[{t+4}:{t+5}], v[{t}:{t+1}], v[{U}:{U+1}]
        v_pk_fma_f32 v[{t+2}:{t+3}], v[{t+6}:{t+7}], v[{t+2}:{t+3}], v[{U+2}:{U+3}]
        v_max_f32 v{t}, 0, v{t}
        v_max_f32 v{t+1}, 0, v{t+1}
        v_max_f32 v{t+2}, 0, v{t+2}
        v_max_f32 v{t+3}, 0, v{t+3}
        v_pk_add_f32 v[{t}:{t+1}], v[{t}:{t+1}], v[88:89]
        v_pk_add_f32 v[{t+2}:{t+3}], v[{t+2}:{t+3}], v[90:91]
        v_cvt_pk_bf16_f32 v{t}, v{t}, v{t+1}
        v_cvt_pk_bf16_f32 v{t+1}, v{t+2}, v{t+3}
        """)
        if i: a("s_add_u32 s6, s6, 32768")
        a(f"buffer_store_dwordx2 v[{t}:{t+1}], v60, s[{SOUT}:{SOUT+3}], s6 offen")
    fin_rd(0); fin_rd(1)
    a("s_cmp_ge_u32 s3, 8\ns_cbranch_scc1 K2_F01")
    fin_rd(2)
    a("K2_F01:\ns_waitcnt lgkmcnt(0)")
    fin(0); fin(1)
    a("""
    s_cmp_ge_u32 s3, 8
    s_cbranch_scc1 K2_DONE
    s_cmp_lt_u32 s3, 4
    s_cbranch_scc1 K2_F2
    s_mov_b32 exec_lo, 0x1fff1fff
    s_mov_b32 exec_hi, 0x1fff1fff
    K2_F2:
    """)
    fin(2)
    a("K2_SLOW:\nK2_DONE:")
    if DIAG:
        a.stamp(); a("s_waitcnt vmcnt(0)")
    a.stamp_out(f"s[{SWS}:{SWS+3}]")
    a("K2_END:\ns_endpgm")
    return a
```

```python
import sys, struct
from asm import Asm
DIAG = "--diag" in sys.argv
NAME="standalone__edge_featured_mpnn_gatedgcn__graph"
N=10000; E=160000; BN=157
TS=0x290000; DUMMY=10240
REC_OFF=0xA40000; CAP=80; CELL=CAP*8; BKT=64*CELL
CNT_OFF=0xCC0000; FLG_OFF=0xCC4000; STAMP_OFF=0xD00000
def f2u(x): return struct.unpack("<I",struct.pack("<f",x))[0]
NLOG2E=f2u(-1.4426950408889634)
XB=16384; WB=XB+81920; LDS_TOTAL=163840
DEG=0; START=1024; MISC=2048; ZERO16=2064; N0T=2304; FLB=2560; RECB=4096
NPCAP=1472
ROWS=784
THR_T=30.0; THR_A=40.0/1.4426950408889634; THR_EC=30.0

class K(Asm):
    def __init__(s,name,stamp_base):
        super().__init__(); s.name=name; s.ns=0; s.sb=stamp_base
    def stamp(s):
        if DIAG:
            s(f"s_memrealtime s[{84+2*s.ns}:{85+2*s.ns}]" if False else f"s_memrealtime s[100:101]\ns_waitcnt lgkmcnt(0)\ns_mov_b32 s{84+s.ns}, s100")
            s.ns+=1
    def stamp_out(s,ws_srd):
        if not DIAG: return
        s.stamp()
        s("s_mov_b64 exec, 1")
        s(f"s_lshl_b32 s100, s2, 4\ns_add_u32 s100, s100, s3\ns_lshl_b32 s100, s100, 6\ns_add_u32 s100, s100, {STAMP_OFF+s.sb}\nv_mov_b32 v1, 0")
        for i in range(s.ns):
            s(f"v_mov_b32 v2, s{84+i}\nbuffer_store_dword v2, v1, {ws_srd}, s100 offen offset:{4*i}")
        s("s_waitcnt vmcnt(0)")

def srd(a,b,size):
    a(f"s_mov_b32 s{b+2}, {size}\ns_mov_b32 s{b+3}, 0x20000")

def dma_addr(a, vW, vX, sSlice):
    a(f"""
    v_lshrrev_b32 v2, 3, v1
    v_and_b32 v3, 7, v1                ; chunk'
    v_and_b32 v4, 2, v2                ; f bit0 <<1
    s_and_b32 s8, s3, 1
    s_lshl_b32 s8, s8, 2               ; f bit1 <<1
    v_or_b32 v4, s8, v4
    v_xor_b32 v3, v3, v4
    v_lshlrev_b32 v3, 4, v3
    v_lshl_add_u32 v3, v2, 9, v3
    s_lshl_b32 s8, s3, 12              ; 8*w rows *512
    s_lshl_b32 s9, {sSlice}, 7
    s_add_u32 s8, s8, s9
    v_add_u32 v{vW}, s8, v3
    v_lshrrev_b32 v2, 5, v1
    s_lshl_b32 s8, s3, 1
    v_add_u32 v2, s8, v2
    v_and_b32 v3, 15, v2
    v_and_b32 v4, 31, v1
    v_xor_b32 v3, v3, v4
    v_lshlrev_b32 v3, 4, v3
    v_lshl_add_u32 v{vX}, v2, 9, v3
    """)
def dma_issue_w(a, vW, srd0, srd1):
    a(f"s_lshl_b32 s8, s3, 10\ns_add_u32 s8, s8, {WB}\ns_mov_b32 s9, 0x10000")
    for m,sr in ((0,srd0),(1,srd1)):
        for p in (0,1):
            off=m*32768+p*16384
            a(f"s_add_u32 m0, s8, {off}" if off else "s_mov_b32 m0, s8")
            a.vmop(f"buffer_load_dwordx4 v{vW}, s[{sr}:{sr+3}], {'s9' if p else '0'} offen lds","W")
def dma_issue_x(a, vX, srdx, sR0, js):
    for j in js:
        if j==0: a(f"s_lshl_b32 s10, s3, 10\ns_add_u32 s10, s10, {XB}")
        a(f"s_add_u32 m0, s10, {j*16384}" if j else "s_mov_b32 m0, s10")
        if j: a(f"s_add_u32 s9, {sR0}, {j*16384}")
        a.vmop(f"buffer_load_dwordx4 v{vX}, s[{srdx}:{srdx+3}], {'s9' if j else sR0} offen lds",f"X{j}")
def frag_addr(a, vWA, vXA):
    a(f"""
    v_lshrrev_b32 v2, 4, v1            ; g
    v_bfe_u32 v3, v1, 2, 2             ; rr
    v_lshl_add_u32 v4, v2, 3, v3       ; 8g+rr
    v_lshrrev_b32 v5, 1, v3            ; f bit0
    v_and_b32 v6, 1, v2
    v_lshl_or_b32 v5, v6, 1, v5        ; f
    s_and_b32 s8, s3, 3                ; ft
    v_xor_b32 v5, s8, v5
    v_lshlrev_b32 v5, 5, v5
    v_lshl_add_u32 v4, v4, 7, v5
    v_and_b32 v5, 3, v1
    v_lshl_add_u32 v4, v5, 3, v4
    v_add_u32 v{vWA}, {WB}, v4
    v_and_b32 v3, 15, v1               ; r
    v_xor_b32 v4, v2, v3               ; g^r
    s_lshr_b32 s9, s3, 2               ; ng
    s_lshl_b32 s9, s9, 13
    s_add_u32 s9, s9, {XB}
    v_lshlrev_b32 v3, 9, v3
    v_add_u32 v3, s9, v3
    v_lshl_add_u32 v{vXA}, v4, 4, v3
    v_xor_b32 v{vXA+1}, 64, v{vXA}
    v_xor_b32 v{vXA+2}, 0x80, v{vXA}
    v_xor_b32 v{vXA+3}, 0xc0, v{vXA}
    """)
WF=64
def load_wfrags(a, vWA):
    for ks in range(8):
        for m in (0,1):
            for hh in (0,1):
                r=WF+m*32+ks*4+hh*2
                a(f"ds_read_b64_tr_b16 v[{r}:{r+1}], v{vWA} offset:{m*32768+ks*4096+hh*512}")
def xread(a, XF, vXA, i, ks):
    r=XF+4*(ks&3)
    a(f"ds_read_b128 v[{r}:{r+3}], v{vXA+(ks&3)} offset:{(i&1)*32768+(ks>>2)*256}")
def tile_pre(a, XF, vXA, i):
    if i==2:
        for k in range(4): a(f"v_add_u32 v{vXA+k}, 0x10000, v{vXA+k}")
    for ks in range(4): xread(a,XF,vXA,i,ks)
def tile_mma(a, XF, vXA, i, acc0, acc1):
    for ks in range(8):
        a(f"s_waitcnt lgkmcnt({3 if ks<5 else 7-ks})")
        r=XF+4*(ks&3)
        for m,ac in ((0,acc0),(1,acc1)):
            w=WF+m*32+ks*4
            c=f"v[{ac}:{ac+3}]" if ks else "0"
            a(f"v_mfma_f32_16x16x32_bf16 v[{ac}:{ac+3}], v[{w}:{w+3}], v[{r}:{r+3}], {c}")
        if ks<4: xread(a,XF,vXA,i,ks+4)

def k1():
    a=K("gcn_k1_kernel",0)
    SX,SW0,SW1,SWS,SSRC,SDST,SE=40,44,48,52,56,60,64
    a(f"""
    s_cmp_ge_u32 s2, 256
    s_cbranch_scc1 K1_END
    s_load_dwordx2 s[{SX}:{SX+1}], s[0:1], 0
    s_load_dwordx2 s[{SW0}:{SW0+1}], s[0:1], 40
    s_load_dwordx2 s[{SW1}:{SW1+1}], s[0:1], 64
    s_load_dwordx2 s[{SWS}:{SWS+1}], s[0:1], 88
    s_load_dwordx2 s[{SSRC}:{SSRC+1}], s[0:1], 16
    s_load_dwordx2 s[{SDST}:{SDST+1}], s[0:1], 24
    s_load_dwordx2 s[{SE}:{SE+1}], s[0:1], 8
    v_lshrrev_b32 v2, 6, v0
    v_and_b32 v1, 63, v0
    v_readfirstlane_b32 s3, v2
    s_lshr_b32 s6, s2, 3               ; j
    s_and_b32 s4, s6, 3                ; slice
    s_lshr_b32 s6, s6, 2
    s_and_b32 s5, s2, 3
    s_lshl_b32 s5, s5, 3
    s_add_u32 s5, s5, s6
    s_lshl_b32 s5, s5, 1
    s_bfe_u32 s6, s2, 0x10002
    s_add_u32 s5, s5, s6               ; blk
    s_mul_i32 s6, s5, {BN*512}         ; r0*512
    """)
    srd(a,SX,N*512); srd(a,SW0,131072); srd(a,SW1,131072); srd(a,SWS,0x10000000)
    srd(a,SSRC,E*4); srd(a,SDST,E*4); srd(a,SE,E*2)
    dma_addr(a,30,31,"s4")
    if DIAG: a.stamp()
    a(f"""
    s_waitcnt lgkmcnt(0)
    s_cmp_lg_u32 s4, 0
    s_cbranch_scc1 K1_NOPART0
    v_lshlrev_b32 v2, 2, v1
    v_mov_b32 v3, 0
    ds_write_b32 v2, v3
    s_cmp_lt_u32 s3, 6
    s_cbranch_scc1 K1_NOPART0
    v_subrev_u32 v2, 384, v0
    v_lshlrev_b32 v3, 4, v2
    v_lshlrev_b32 v4, 3, v2
    v_cmp_gt_u32 vcc, 625, v2
    s_mul_i32 s8, s5, 10000
    s_mul_i32 s9, s5, 5000
    s_mov_b64 s[12:13], vcc
    s_mov_b64 exec, vcc
    buffer_load_dwordx4 v[64:67], v3, s[{SDST}:{SDST+3}], s8 offen
    buffer_load_dwordx4 v[68:71], v3, s[{SSRC}:{SSRC+3}], s8 offen
    buffer_load_dwordx2 v[72:73], v4, s[{SE}:{SE+3}], s9 offen
    s_mov_b64 exec, -1
    K1_NOPART0:
    """)
    dma_issue_w(a,30,SW0,SW1)
    dma_issue_x(a,31,SX,"s6",range(5))
    frag_addr(a,30,32)
    a(f"""
    v_and_b32 v3, 15, v1
    v_lshlrev_b32 v3, 8, v3
    v_lshl_add_u32 v3, v2, 4, v3
    s_lshr_b32 s9, s3, 2
    s_lshl_b32 s9, s9, 12
    s_lshl_b32 s8, s8, 6
    s_add_u32 s8, s8, s9
    v_add_u32 v29, s8, v3
    s_mul_i32 s14, s4, {TS}
    s_lshr_b32 s8, s6, 1
    s_add_u32 s14, s14, s8             ; T soffset
    s_mov_b32 s70, {NLOG2E}
    s_mov_b32 s71, {NLOG2E}
    s_mov_b32 s72, 0x07060302
    s_mov_b32 s73, 0xffff0000
    s_movk_i32 s74, {-BN}
    v_mov_b32 v28, 0
    v_mov_b32 v24, 0
    v_mov_b32 v25, 0
    v_mov_b32 v26, 0
    v_mov_b32 v27, 0
    s_cmp_lg_u32 s4, 0
    s_cbranch_scc1 K1_NOPART1
    s_waitcnt lgkmcnt(0)
    s_barrier
    s_cmp_lt_u32 s3, 6
    s_cbranch_scc1 K1_NOPART1
    s_mov_b64 exec, s[12:13]
    v_mov_b32 v2, 1
    s_waitcnt vmcnt(9)
    """)
    for k in range(4):
        a(f"""
        v_mul_u32_u24 v{76+k}, 13358, v{64+k}
        v_lshrrev_b32 v{76+k}, 21, v{76+k}
        v_lshlrev_b32 v3, 2, v{76+k}
        ds_add_rtn_u32 v{80+k}, v3, v2
        v_mad_i32_i24 v{17+2*k}, v{76+k}, s74, v{64+k}
        v_lshlrev_b32 v{17+2*k}, 2, v{17+2*k}
        v_mul_u32_u24 v{24+k}, {BKT}, v{76+k}
        """)
        if k&1: a(f"v_and_or_b32 v{16+2*k}, v{72+k//2}, s73, v{68+k}")
        else: a(f"v_lshl_or_b32 v{16+2*k}, v{72+k//2}, 16, v{68+k}")
    a("s_waitcnt lgkmcnt(0)")
    for k in range(4):
        a(f"v_min_u32 v{80+k}, {CAP-1}, v{80+k}\nv_lshl_add_u32 v{24+k}, v{80+k}, 3, v{24+k}")
    a("s_mov_b64 exec, -1\nK1_NOPART1:")
    XF=48
    def epi(i):
        a(f"""
        v_pk_mul_f32 v[40:41], v[40:41], s[70:71]
        v_pk_mul_f32 v[42:43], v[42:43], s[70:71]
        v_max3_f32 v28, |v44|, |v45|, v28
        v_max3_f32 v28, |v46|, |v47|, v28
        v_add_u32 v44, 0x8000, v44
        v_add_u32 v46, 0x8000, v46
        v_max3_f32 v28, |v40|, |v41|, v28
        v_max3_f32 v28, |v42|, |v43|, v28
        v_perm_b32 v36, v40, v44, s72
        v_perm_b32 v37, v41, v45, s72
        v_perm_b32 v38, v42, v46, s72
        v_perm_b32 v39, v43, v47, s72
        """)
        if i: a(f"s_add_u32 s14, s14, 16384")
        a.vmop(f"buffer_store_dwordx4 v[36:39], v29, s[{SWS}:{SWS+3}], s14 offen",f"T{i}")
    a.vmwait("X1"); a("s_barrier"); a.stamp()
    load_wfrags(a,30)
    tile_pre(a,XF,32,0)
    tile_mma(a,XF,32,0,40,44)
    a.vmwait("X3"); a("s_barrier"); a.stamp()
    tile_pre(a,XF,32,1)
    epi(0)
    tile_mma(a,XF,32,1,40,44)
    a.vmwait("X4"); a("s_barrier"); a.stamp()
    a(f"""
    s_cmp_lg_u32 s4, 0
    s_cbranch_scc1 K1_NOPART2
    s_cmp_lt_u32 s3, 6
    s_cbranch_scc1 K1_CNT
    s_mul_i32 s8, s5, {CELL}
    s_add_u32 s8, s8, {REC_OFF}
    s_mov_b64 exec, s[12:13]
    """)
    for k in range(4): a(f"buffer_store_dwordx2 v[{16+2*k}:{17+2*k}], v{24+k}, s[{SWS}:{SWS+3}], s8 offen")
    a(f"""
    s_mov_b64 exec, -1
    s_branch K1_NOPART2
    K1_CNT:
    s_cmp_lg_u32 s3, 5
    s_cbranch_scc1 K1_NOPART2
    v_lshlrev_b32 v2, 2, v1
    ds_read_b32 v3, v2
    v_lshlrev_b32 v2, 8, v1
    s_lshl_b32 s8, s5, 2
    s_add_u32 s8, s8, {CNT_OFF}
    s_waitcnt lgkmcnt(0)
    buffer_store_dword v3, v2, s[{SWS}:{SWS+3}], s8 offen
    K1_NOPART2:
    s_cmp_ge_u32 s3, 8
    s_cbranch_scc1 K1_T2SKIP
    """)
    tile_pre(a,XF,32,2)
    epi(1)
    tile_mma(a,XF,32,2,40,44)
    a(f"""
    s_cmp_lt_u32 s3, 4
    s_cbranch_scc1 K1_T2SKIP
    s_mov_b32 exec_lo, 0x1fff1fff
    s_mov_b32 exec_hi, 0x1fff1fff
    K1_T2SKIP:
    s_nop 7
    """)
    epi(2)
    a(f"""
    s_mov_b64 exec, -1
    v_cmp_nge_f32 vcc, {f2u(THR_T)}, v28
    s_lshl_b32 s8, s4, 6
    s_add_u32 s8, s8, s5
    s_lshl_b32 s8, s8, 4
    s_add_u32 s8, s8, s3
    s_lshl_b32 s8, s8, 2
    s_add_u32 s8, s8, {FLG_OFF}
    s_cmp_lg_u64 vcc, 0
    s_cselect_b32 s9, 1, 0
    v_mov_b32 v2, s9
    v_mov_b32 v3, 0
    s_mov_b64 exec, 1
    buffer_store_dword v2, v3, s[{SWS}:{SWS+3}], s8 offen
    s_mov_b64 exec, -1
    s_add_u32 s8, s5, s3
    s_cmp_lg_u32 s8, 0
    s_cbranch_scc1 K1_NODUMMY
    v_lshlrev_b32 v2, 2, v1
    v_mov_b32 v3, {f2u(100.0)}
    s_mul_i32 s8, s4, {TS}
    s_add_u32 s8, s8, {DUMMY*256}
    buffer_store_dword v3, v2, s[{SWS}:{SWS+3}], s8 offen
    K1_NODUMMY:
    """)
    if DIAG:
        a.stamp(); a("s_waitcnt vmcnt(0)")
    a.stamp_out(f"s[{SWS}:{SWS+3}]")
    a("K1_END:\ns_endpgm")
    return a

from k2 import k2

def emit(ks):
    ref=open(f"cdna_kernels/{NAME}.s.ref").read().split("\n")
    head=[l for l in ref if l.startswith(";") and "@launch" not in l and "Override" not in l and "grid=ceil" not in l]
    out="\n".join(head)+"\n"
    for k,lds in ks: out+=f"; @launch kernel={k.name} grid=(256,1,1) block=(1024,1,1) lds={lds}\n"
    out+='.amdgcn_target "amdgcn-amd-amdhsa--gfx950"\n.text\n'
    for k,_ in ks:
        out+=f".globl {k.name}\n.p2align 8\n.type {k.name},@function\n{k.name}:\n"+k.text()
    out+='.section .rodata,"a"\n'
    for k,_ in ks:
        out+=f""".p2align 6
.amdhsa_kernel {k.name}
  .amdhsa_next_free_vgpr 128
  .amdhsa_next_free_sgpr 102
  .amdhsa_accum_offset 128
  .amdhsa_group_segment_fixed_size 0
  .amdhsa_kernarg_size 96
  .amdhsa_user_sgpr_count 2
  .amdhsa_user_sgpr_kernarg_segment_ptr 1
  .amdhsa_system_sgpr_workgroup_id_x 1
.end_amdhsa_kernel
"""
    return out
if __name__=="__main__":
    o=[x for x in sys.argv[1:] if not x.startswith("--")]
    txt=emit([(k1(),LDS_TOTAL),(k2(sys.modules[__name__]),LDS_TOTAL)])
    open(o[0],"w").write(txt)
```
